```python
import torch

def _softmax(x, axis=-1):
    return torch.softmax(x, dim=axis)

def _gelu(x):
    return torch.nn.functional.gelu(x, approximate='tanh')

def _silu(x):
    return torch.nn.functional.silu(x)

def _sigmoid(x):
    return torch.sigmoid(x)

def _layernorm(x, axis=-1, eps=1e-05):
    m = x.mean(dim=axis, keepdim=True)
    v = x.var(dim=axis, keepdim=True, unbiased=False)
    return (x - m) / torch.sqrt(v + eps)

def _scatter_add(tgt, idx, src, axis=0):
    return tgt.clone().index_add_(axis, idx, src)

def _segment_sum(src, seg, n):
    out = torch.zeros((n,) + src.shape[1:], dtype=src.dtype)
    return out.index_add_(0, seg, src)

def _pad(x, pw):
    flat = tuple((v for pair in reversed(pw) for v in pair))
    return torch.nn.functional.pad(x, flat)
kernel_name = 'gather_scatter__molecular_angular_painn__graph'

def setup_inputs():

    _w = lambda a: (lambda t: t.to(torch.bfloat16) if t.is_floating_point() else t)(torch.as_tensor(a))
    N, deg, D = (12500, 32, 128)
    n_rbf = max(4, 4)
    E = N * deg
    cutoff = 5.0
    freqs = (torch.arange(1, n_rbf + 1) * torch.pi / cutoff).to(float)
    return {'sv': _w((lambda *s: torch.randn(*s, dtype=torch.bfloat16) * 0.4)(N, 4, D) * 0.3), 'pos': _w((lambda *s: torch.randn(*s, dtype=torch.bfloat16) * 3.2)(N, 3) * 1.2), 'src': _w((lambda lo, hi, *s: torch.randint(lo, hi, s))(0, N, E).to(torch.int64)), 'dst': _w((lambda lo, hi, *s: torch.randint(lo, hi, s))(0, N, E).to(torch.int64)), 'freqs': _w(freqs), 'w_phi1': _w((lambda *s: torch.randn(*s, dtype=torch.bfloat16) * 3.2)(D, D) / D ** 0.5), 'w_phi2': _w((lambda *s: torch.randn(*s, dtype=torch.bfloat16) * 3.2)(D, 3 * D) / D ** 0.5), 'w_rbf': _w((lambda *s: torch.randn(*s, dtype=torch.bfloat16) * 3.2)(n_rbf, 3 * D) / n_rbf ** 0.5)}

def reference(sv, pos, src, dst, freqs, w_phi1, w_phi2, w_rbf):
    N, _, D = sv.shape
    E = src.shape[0]
    PI, cutoff = (3.141592653589793, 5.0)
    s, v = (sv[:, 0, :].clone(), sv[:, 1:, :].clone())
    r_vec = pos[src] - pos[dst]
    d = torch.sqrt((r_vec * r_vec).sum(-1) + 1e-08)
    r_hat = r_vec / d[:, None]
    rbf = torch.sin(d[:, None] * freqs[None, :]) / d[:, None]
    fcut = 0.5 * (torch.cos(PI * d / cutoff) + 1.0)
    fcut = torch.where(d < cutoff, fcut, 0.0 * d)
    Wf = rbf @ w_rbf * fcut[:, None]
    phi = (_silu(s @ w_phi1) @ w_phi2)[src]
    m = phi * Wf
    m_s, m_vv, m_vr = (m[:, :D].clone(), m[:, D:2 * D].clone(), m[:, 2 * D:].clone())
    ds = _segment_sum(m_s, dst, N)
    dv_e = m_vv[:, None, :] * v[src] + m_vr[:, None, :] * r_hat[:, :, None]
    dv = _segment_sum(dv_e.reshape(E, 3 * D), dst, N).reshape(N, 3, D)
    return sv + torch.concatenate([ds[:, None, :], dv], axis=1)
```

```python
import re

TRANS = ('v_exp_f32','v_log_f32','v_rcp_f32','v_rsq_f32','v_sqrt_f32','v_sin_f32','v_cos_f32','v_rcp_iflag_f32')

def parse_regs(tok):
    tok = tok.strip()
    neg = tok.lstrip('-')
    m = re.fullmatch(r'abs\((.*)\)', neg)
    if m: neg = m.group(1)
    m = re.fullmatch(r'([vsa])(\d+)', neg)
    if m: return m.group(1), [int(m.group(2))]
    m = re.fullmatch(r'([vsa])\[(\d+):(\d+)\]', neg)
    if m: return m.group(1), list(range(int(m.group(2)), int(m.group(3))+1))
    if neg == 'vcc': return 's', [106,107]
    if neg == 'vcc_lo': return 's', [106]
    if neg == 'vcc_hi': return 's', [107]
    if neg == 'exec': return 'x', [0]
    if neg == 'm0': return 'm', [0]
    return None, []

class Ins:
    def __init__(self, text):
        self.text = text
        t = text.split(';')[0].strip()
        self.is_label = t.endswith(':')
        self.label = t[:-1] if self.is_label else None
        self.mn = None; self.vw=set(); self.vr=set(); self.sw=set(); self.sr=set()
        self.kind = 'other'; self.nop = 1; self.passes = 0; self.srcC=set(); self.srcAB=set()
        self.dpp=False; self.wide_store=False; self.lanesel=set(); self.target=None
        if self.is_label or not t or t.startswith('.'):
            self.nop = 0; self.kind='meta'; return
        parts = t.split(None,1)
        mn = parts[0]; self.mn = mn
        rest = parts[1] if len(parts)>1 else ''
        ops=[]; cur=''; depth=0
        for ch in rest:
            if ch=='[': depth+=1
            if ch==']': depth-=1
            if ch==',' and depth==0: ops.append(cur); cur=''
            else: cur+=ch
        if cur.strip(): ops.append(cur)
        mods=''
        if ops:
            l = ops[-1].strip().split(None,1)
            ops[-1]=l[0]; mods = l[1] if len(l)>1 else ''
        ops=[o.strip() for o in ops]
        self.ops=ops; self.mods=mods
        def rd(tok):
            k,r=parse_regs(tok)
            if k in('v','a'): self.vr.update(r)
            elif k=='s': self.sr.update(r)
        def wr(tok):
            k,r=parse_regs(tok)
            if k in('v','a'): self.vw.update(r)
            elif k=='s': self.sw.update(r)
        if mn=='s_nop':
            self.kind='salu'; self.nop=int(ops[0],0)+1; return
        if mn.startswith('s_cbranch') or mn=='s_branch':
            self.kind='branch'; self.target=ops[0]; return
        if mn.startswith('s_'):
            self.kind='salu'
            if mn.startswith('s_mov') and ops and ops[0]=='m0': self.kind='m0w'
            return
        if mn.startswith('v_mfma'):
            self.kind='mfma'
            self.passes = 8 if '32x32' in mn else 4
            wr(ops[0]);
            for o in ops[1:3]:
                k,r=parse_regs(o); self.srcAB.update(r); self.vr.update(r)
            k,r=parse_regs(ops[3])
            if k in('v','a'): self.srcC.update(r); self.vr.update(r)
            return
        if mn.startswith('v_'):
            self.kind='valu'
            base = mn.replace('_e32','').replace('_e64','').replace('_dpp','').replace('_sdwa','')
            if base in TRANS: self.kind='trans'
            if 'row_' in mods or 'quad_perm' in mods or 'wave_' in mods or mn.endswith('_dpp'): self.dpp=True
            if base.startswith('v_permlane'):
                self.kind='permlane'
                for o in ops: rd(o); wr(o)
                return
            if base in('v_readlane_b32','v_readfirstlane_b32'):
                self.kind='readlane'
                wr(ops[0]); rd(ops[1])
                if len(ops)>2:
                    k,r=parse_regs(ops[2])
                    if k=='s': self.lanesel.update(r)
                return
            wr(ops[0]); n=1
            if base in('v_add_co_u32','v_sub_co_u32','v_addc_co_u32','v_subb_co_u32','v_subrev_co_u32','v_mad_u64_u32'):
                wr(ops[1]); n=2
            for o in ops[n:]: rd(o)
            if base in('v_fmac_f32','v_dot2c_f32_bf16','v_pk_fmac_f16') or self.dpp: rd(ops[0])
            if base=='v_cndmask_b32' and len(ops)==3: self.sr.update([106,107])
            return
        if mn.startswith('ds_'):
            self.kind='ds'
            if mn.startswith('ds_read') or 'rtn' in mn or 'permute' in mn or 'swizzle' in mn:
                wr(ops[0]);
                for o in ops[1:]: rd(o)
                if 'd16' in mn: rd(ops[0])
            else:
                for o in ops: rd(o)
            return
        if mn.startswith('buffer_') or mn.startswith('global_'):
            self.kind='vmem'
            if 'load' in mn and 'lds' not in mods.split():
                wr(ops[0])
                for o in ops[1:]: rd(o)
                if 'd16' in mn: rd(ops[0])
            else:
                for o in ops: rd(o)
                if 'store' in mn and ('x3' in mn or 'x4' in mn):
                    self.wide_store=True
                    k,r=parse_regs(ops[0] if mn.startswith('buffer_') else ops[1]); self.sdata=set(r)
            return
        raise ValueError('unparsed: '+text)

VALUK=('valu','trans','permlane','readlane')
def need(p, c):
    n=0
    pv = p.kind in VALUK
    cv = c.kind in VALUK
    if pv and c.kind=='mfma' and (p.vw & c.vr): n=max(n,2)
    if p.kind=='mfma':
        big = {4:8,8:12}[p.passes]
        if (cv or c.kind in('vmem','ds')) and (p.vw & (c.vr|c.vw)): n=max(n,big)
        if c.kind=='mfma':
            if p.vw & c.srcAB: n=max(n,big)
            if p.vw & c.srcC:
                if not (p.vw==c.srcC and p.passes==c.passes): n=max(n,{4:6,8:10}[p.passes])
            elif p.vw & c.vw: n=max(n,big)
        if cv and (p.srcC & c.vw): n=max(n,{4:3,8:7}[p.passes])
    if pv and c.dpp and (p.vw & c.vr): n=max(n,2)
    if pv and c.kind=='permlane' and (p.vw & c.vr): n=max(n,2)
    if pv and c.kind=='readlane' and (p.vw & c.vr): n=max(n,1)
    if p.kind=='trans' and cv and c.kind!='trans' and (p.vw & c.vr): n=max(n,1)
    if pv and p.sw:
        if cv and (p.sw & c.sr): n=max(n,2)
        if c.kind=='readlane' and (p.sw & c.lanesel): n=max(n,4)
        if c.kind=='vmem' and (p.sw & c.sr): n=max(n,5)
    if p.wide_store and (p.sdata & c.vw): n=max(n, 2 if cv else 1)
    if p.kind=='m0w' and c.kind=='vmem' and 'lds' in c.mods.split(): n=max(n,1)
    return n

class Asm:
    def __init__(self): self.L=[]
    def __call__(self, s):
        for line in s.strip('\n').split('\n'):
            line=line.strip()
            if line: self.L.append(line)
    def finalize(self):
        ins=[Ins(t) for t in self.L]
        WIN=14
        def pad_needed(prev, c):
            dist=0; worst=0
            for p in reversed(prev):
                if p.kind=='meta': continue
                n=need(p,c)
                if n>dist: worst=max(worst,n-dist)
                dist+=p.nop
                if dist>=WIN: break
            return worst
        out=[]
        for c in ins:
            if c.kind!='meta':
                w=pad_needed(out[-40:],c)
                if w>0: out.append(Ins('s_nop %d'%(w-1)))
            out.append(c)
        changed=True
        while changed:
            changed=False
            labels={x.label:i for i,x in enumerate(out) if x.is_label}
            for i,b in enumerate(out):
                if b.kind=='branch' and b.target in labels:
                    t=labels[b.target]
                    seq=out[max(0,i-40):i+1]
                    worst=0; k=0
                    for c in out[t:t+30]:
                        if c.kind=='meta': continue
                        w=pad_needed(seq,c)
                        worst=max(worst,w)
                        seq=seq+[c]; k+=c.nop
                        if k>=WIN or (c.kind=='branch' and c.mn=='s_branch'): break
                    if worst>0:
                        out.insert(i,Ins('s_nop %d'%(worst-1)))
                        changed=True; break
        return '\n'.join(('' if x.is_label or x.text.startswith('.') else '  ')+x.text for x in out)+'\n'
```

```python
import sys, struct
from asmlib import Asm

N=12500; E=400000
NCH=60; CH=6667
NIT=7
NMLP=196
NB=13
NBINS=(N+NB-1)//NB
MAGIC=((1<<20)+NB-1)//NB
assert all((d*MAGIC)>>20 == d//NB for d in range(N)) and NBINS<=1024 and NB<=16
PHI_OFF=0; PHI_SZ=N*768
TAB_OFF=0x940000; TAB_SZ=1024*64*4
REC_OFF=0x980000; REC_SZ=NCH*CH*32
def f2u(x): return struct.unpack('<I',struct.pack('<f',x))[0]

L_HIST=0; L_WSUM=4096; L_LIST=4224; L_POS=30976
L_W1=0; L_W2=32768; L_HS=131072; HSTR=272
assert L_LIST+CH*4<=L_POS
K1_LDS=max(L_POS+NIT*1024*16, L_HS+64*HSTR)
K1_LDS=(K1_LDS+255)//256*256
L_CNT=0; L_REC=128; K2_PIECES=1280; K2_LDS=L_REC+K2_PIECES*16; L_ZERO=L_REC+(K2_PIECES-1)*16
assert (8*NCH+4*16)*2 < K2_PIECES-1

a=Asm()
def srd(d, b, size, off=0):
    if off:
        a(f"s_add_u32 s{d}, s{b}, {off}")
        a(f"s_addc_u32 s{d+1}, s{b+1}, 0")
    else:
        a(f"s_mov_b32 s{d}, s{b}")
        a(f"s_mov_b32 s{d+1}, s{b+1}")
    a(f"s_mov_b32 s{d+2}, {size}")
    a(f"s_mov_b32 s{d+3}, 0x20000")

def rb1(x, t):
    a(f"v_cvt_pk_bf16_f32 v{t}, v{x}, v{x}")
    a(f"v_lshlrev_b32 v{x}, 16, v{t}")
def rb2(x, y, t, smask):
    a(f"v_cvt_pk_bf16_f32 v{t}, v{x}, v{y}")
    a(f"v_lshlrev_b32 v{x}, 16, v{t}")
    a(f"v_and_b32 v{y}, s{smask}, v{t}")

hdr=f"""; generated by dev/gen.py -- PaiNN message passing: K1 = node MLP + edge binning, K2 = gather/accumulate
; @launch kernel=painn_k1_kernel grid=({NCH+NMLP},1,1) block=(1024,1,1) lds={K1_LDS}
; @launch kernel=painn_k2_kernel grid=({NBINS},1,1) block=(256,1,1) lds={K2_LDS}
.amdgcn_target "amdgcn-amd-amdhsa--gfx950"
.text
"""

a(".globl painn_k1_kernel\n.p2align 8\n.type painn_k1_kernel,@function\npainn_k1_kernel:")
a(f"s_cmp_ge_u32 s2, {NCH+NMLP}")
a("s_cbranch_scc1 K1_END")
a("s_load_dwordx16 s[16:31], s[0:1], 0")
a("s_load_dwordx2 s[32:33], s[0:1], 80")
a("s_mov_b32 s58, 0xffff0000")
a("v_lshrrev_b32 v1, 6, v0")
a("v_readfirstlane_b32 s66, v1")
a(f"s_cmp_ge_u32 s2, {NCH}")
a("s_cbranch_scc1 K1_MLP")

SRC=2; DST=9; PS=16; PK=44; HA=51; RK=58; T=65
a("s_waitcnt lgkmcnt(0)")
a("s_load_dwordx2 s[60:61], s[24:25], 0")
srd(36,18,N*6); srd(40,20,E*4); srd(44,22,E*4)
srd(48,32,TAB_SZ,TAB_OFF)
a(f"s_mul_i32 s56, s2, {CH}")
a(f"s_sub_u32 s57, {E}, s56")
a(f"s_min_u32 s57, s57, {CH}")
a(f"s_mul_i32 s3, s2, {CH*32}")
a(f"s_add_u32 s3, s3, {REC_OFF}")
a("s_add_u32 s52, s32, s3")
a("s_addc_u32 s53, s33, 0")
a(f"s_mov_b32 s54, {CH*32}")
a("s_mov_b32 s55, 0x20000")
a(f"s_mov_b32 s59, {MAGIC}")
a("v_mul_u32_u24 v1, 12, v0")
for it in range(NIT):
    a(f"s_mov_b32 s4, {it*12288}")
    a(f"buffer_load_dwordx3 v[{PS+4*it}:{PS+4*it+2}], v1, s[36:39], s4 offen")
a("s_lshl_b32 s3, s56, 2")
a("v_lshlrev_b32 v1, 2, v0")
a(f"v_add_u32 v{T}, s3, v1")
for it in range(NIT):
    a(f"s_mov_b32 s4, {it*4096}")
    a(f"buffer_load_dword v{SRC+it}, v{T}, s[40:43], s4 offen")
    a(f"buffer_load_dword v{DST+it}, v{T}, s[44:47], s4 offen")
a(f"v_mov_b32 v{T+1}, 0")
a(f"v_add_u32 v{T+2}, {L_HIST}, v1")
a(f"ds_write_b32 v{T+2}, v{T+1}")
a(f"v_lshlrev_b32 v{T+3}, 4, v0")
a(f"v_add_u32 v{T+3}, {L_POS}, v{T+3}")
a(f"v_add_u32 v{T+4}, 65536, v{T+3}")
for it in range(NIT):
    b=PS+4*it
    a(f"s_waitcnt vmcnt({2*NIT + NIT-1-it})")
    a(f"v_and_b32 v{b+3}, s58, v{b+2}")
    a(f"v_alignbit_b32 v{b+2}, v{b+2}, v{b+1}, 16")
    a(f"v_lshlrev_b32 v{b+1}, 16, v{b+1}")
    if it<4: a(f"ds_write_b128 v{T+3}, v[{b}:{b+3}] offset:{it*16384}")
    else:    a(f"ds_write_b128 v{T+4}, v[{b}:{b+3}] offset:{(it-4)*16384}")
a("s_waitcnt lgkmcnt(0)")
a("s_barrier")
a("s_lshl_b32 s62, s60, 16")
a("s_and_b32 s63, s60, s58")
a("s_lshl_b32 s64, s61, 16")
a("s_and_b32 s65, s61, s58")
a("s_waitcnt vmcnt(0)")
for it in range(NIT):
    b=PS+4*it
    a(f"v_lshlrev_b32 v{T}, 3, v{SRC+it}")
    a(f"v_lshlrev_b32 v{T+1}, 3, v{DST+it}")
    a(f"ds_read_b64 v[{b}:{b+1}], v{T} offset:{L_POS}")
    a(f"ds_read_b64 v[{b+2}:{b+3}], v{T+1} offset:{L_POS}")
a(f"s_mov_b32 s5, {f2u(25.25)}")
for it in range(NIT):
    b=PS+4*it
    a(f"v_lshl_or_b32 v{PK+it}, v{DST+it}, 16, v{SRC+it}")
    a(f"v_mul_u32_u24 v{HA+it}, s59, v{DST+it}")
    a(f"v_lshrrev_b32 v{HA+it}, 20, v{HA+it}")
    a(f"v_lshlrev_b32 v{HA+it}, 2, v{HA+it}")
    a(f"s_waitcnt lgkmcnt({2*(NIT-1-it)})")
    a(f"v_lshlrev_b32 v{T}, 16, v{b}")
    a(f"v_lshlrev_b32 v{T+1}, 16, v{b+2}")
    a(f"v_and_b32 v{b}, s58, v{b}")
    a(f"v_and_b32 v{b+2}, s58, v{b+2}")
    a(f"v_sub_f32 v{T}, v{T}, v{T+1}")
    a(f"v_sub_f32 v{b}, v{b}, v{b+2}")
    a(f"v_sub_f32 v{b+1}, v{b+1}, v{b+3}")
    a(f"v_mul_f32 v{T}, v{T}, v{T}")
    a(f"v_fmac_f32 v{T}, v{b}, v{b}")
    a(f"v_fmac_f32 v{T}, v{b+1}, v{b+1}")
    a(f"v_cmp_gt_f32 s[{70+2*it}:{71+2*it}], s5, v{T}")
a(f"s_sub_u32 s4, s57, {(NIT-1)*1024}")
a("v_cmp_gt_i32 vcc, s4, v0")
a(f"s_and_b64 s[{70+2*(NIT-1)}:{71+2*(NIT-1)}], s[{70+2*(NIT-1)}:{71+2*(NIT-1)}], vcc")
a(f"v_mov_b32 v{T}, 1")
for it in range(NIT):
    a(f"s_mov_b64 exec, s[{70+2*it}:{71+2*it}]")
    a(f"ds_add_rtn_u32 v{RK+it}, v{HA+it}, v{T} offset:{L_HIST}")
a("s_mov_b64 exec, -1")
a("s_waitcnt lgkmcnt(0)")
a("s_barrier")
a("v_lshlrev_b32 v1, 2, v0")
a(f"ds_read_b32 v{T}, v1 offset:{L_HIST}")
a("s_waitcnt lgkmcnt(0)")
a(f"v_mov_b32 v{T+1}, v{T}")
for sh in (1,2,4,8):
    a(f"v_add_u32_dpp v{T+1}, v{T+1}, v{T+1} row_shr:{sh} row_mask:0xf bank_mask:0xf")
a(f"v_add_u32_dpp v{T+1}, v{T+1}, v{T+1} row_bcast:15 row_mask:0xa bank_mask:0xf")
a(f"v_add_u32_dpp v{T+1}, v{T+1}, v{T+1} row_bcast:31 row_mask:0xc bank_mask:0xf")
a(f"v_readlane_b32 s4, v{T+1}, 63")
a("s_lshl_b32 s5, s66, 2")
a(f"s_add_u32 s5, s5, {L_WSUM}")
a(f"v_mov_b32 v{T+2}, s4")
a(f"v_mov_b32 v{T+3}, s5")
a(f"ds_write_b32 v{T+3}, v{T+2}")
a("s_waitcnt lgkmcnt(0)")
a("s_barrier")
a(f"v_and_b32 v{T+2}, 15, v0")
a(f"v_lshlrev_b32 v{T+2}, 2, v{T+2}")
a(f"ds_read_b32 v{T+3}, v{T+2} offset:{L_WSUM}")
a("s_waitcnt lgkmcnt(0)")
a(f"v_mov_b32 v{T+4}, v{T+3}")
for sh in (1,2,4,8):
    a(f"v_add_u32_dpp v{T+4}, v{T+4}, v{T+4} row_shr:{sh} row_mask:0xf bank_mask:0xf")
a(f"v_sub_u32 v{T+3}, v{T+4}, v{T+3}")
a(f"v_readlane_b32 s67, v{T+4}, 15")
a(f"v_readlane_b32 s4, v{T+3}, s66")
a(f"v_sub_u32 v{T+1}, v{T+1}, v{T}")
a(f"v_add_u32 v{T+1}, s4, v{T+1}")
a(f"ds_write_b32 v1, v{T+1} offset:{L_HIST}")
a(f"v_lshl_or_b32 v{T+2}, v{T}, 16, v{T+1}")
a("s_lshl_b32 s4, s2, 2")
a(f"v_lshlrev_b32 v{T+3}, 8, v0")
a(f"v_add_u32 v{T+3}, s4, v{T+3}")
a(f"buffer_store_dword v{T+2}, v{T+3}, s[48:51], 0 offen")
a("s_waitcnt lgkmcnt(0)")
a("s_barrier")
for it in range(NIT):
    a(f"ds_read_b32 v{PS+it}, v{HA+it} offset:{L_HIST}")
for it in range(NIT):
    a(f"s_waitcnt lgkmcnt({NIT-1-it})")
    a(f"v_add_lshl_u32 v{PS+it}, v{PS+it}, v{RK+it}, 2")
for it in range(NIT):
    a(f"s_mov_b64 exec, s[{70+2*it}:{71+2*it}]")
    a(f"ds_write_b32 v{PS+it}, v{PK+it} offset:{L_LIST}")
a("s_mov_b64 exec, -1")
a("s_waitcnt lgkmcnt(0)")
a("s_barrier")
a("s_mov_b32 s68, 0")
a(f"s_mov_b32 s6, {f2u(1e-8)}")
a(f"s_mov_b32 s7, {f2u(3.141592653589793)}")
a(f"s_mov_b32 s8, {f2u(0.2)}")
a(f"s_mov_b32 s9, {f2u(5.0)}")
a(f"s_mov_b32 s10, {NB}")
a("s_mov_b32 s11, 0xffff")
a("K1_DENSE:")
a("s_cmp_ge_u32 s68, s67")
a("s_cbranch_scc1 K1_END")
a("v_add_u32 v2, s68, v0")
a("v_cmp_gt_u32 vcc, s67, v2")
a("s_and_saveexec_b64 s[84:85], vcc")
a("s_cbranch_execz K1_DSKIP")
a("v_lshlrev_b32 v3, 2, v2")
a(f"ds_read_b32 v4, v3 offset:{L_LIST}")
a("s_waitcnt lgkmcnt(0)")
a("v_and_b32 v5, 0xffff, v4")
a("v_lshrrev_b32 v6, 16, v4")
a("v_lshlrev_b32 v7, 3, v5")
a("v_lshlrev_b32 v8, 3, v6")
a(f"ds_read_b64 v[10:11], v7 offset:{L_POS}")
a(f"ds_read_b64 v[12:13], v8 offset:{L_POS}")
a("v_mul_u32_u24 v7, s59, v6")
a("v_lshrrev_b32 v7, 20, v7")
a("v_mul_u32_u24 v7, s10, v7")
a("v_sub_u32 v6, v6, v7")
a("s_waitcnt lgkmcnt(0)")
a("v_lshlrev_b32 v14, 16, v10")
a("v_lshlrev_b32 v15, 16, v12")
a("v_and_b32 v10, s58, v10")
a("v_and_b32 v12, s58, v12")
a("v_sub_f32 v21, v14, v15")
a("v_sub_f32 v22, v10, v12")
a("v_sub_f32 v23, v11, v13")
rb2(21,22,9,58); rb1(23,9)
a("v_mul_f32 v14, v21, v21")
a("v_mul_f32 v15, v22, v22")
a("v_mul_f32 v16, v23, v23")
rb2(14,15,9,58); rb1(16,9)
a("v_add_f32 v14, v14, v15")
a("v_add_f32 v14, v14, v16")
rb1(14,9)
a("v_add_f32 v14, s6, v14")
rb1(14,9)
a("v_sqrt_f32 v14, v14")
rb1(14,9)
a("v_rcp_f32 v15, v14")
a("v_mul_f32 v16, s62, v14")
a("v_mul_f32 v17, s63, v14")
a("v_mul_f32 v18, s64, v14")
a("v_mul_f32 v19, s65, v14")
a("v_mul_f32 v10, s7, v14")
rb2(16,17,9,58); rb2(18,19,9,58); rb1(10,9)
a("v_mul_f32 v10, s8, v10")
rb1(10,9)
for r in (16,17,18,19,10):
    a(f"v_mul_f32 v{r}, 0.15915494, v{r}")
for r in (16,17,18,19):
    a(f"v_sin_f32 v{r}, v{r}")
a("v_cos_f32 v10, v10")
a("v_mul_f32 v21, v21, v15")
a("v_mul_f32 v22, v22, v15")
a("v_mul_f32 v23, v23, v15")
rb2(21,22,9,58); rb1(23,9)
rb2(16,17,9,58); rb2(18,19,9,58); rb1(10,9)
a("v_add_f32 v10, 1.0, v10")
rb1(10,9)
a("v_mul_f32 v10, 0.5, v10")
for r in (16,17,18,19):
    a(f"v_mul_f32 v{r}, v{r}, v15")
rb2(16,17,9,58); rb2(18,19,9,58)
a("v_cmp_gt_f32 vcc, s9, v14")
a("v_mov_b32 v9, s11")
a("v_cndmask_b32 v10, 0, v10, vcc")
a("v_cndmask_b32 v5, v9, v5, vcc")
for r in (16,17,18,19):
    a(f"v_mul_f32 v{r}, v{r}, v10")
a("v_cvt_pk_bf16_f32 v24, v16, v17")
a("v_cvt_pk_bf16_f32 v25, v18, v19")
a("v_lshlrev_b32 v11, 16, v24")
a("v_and_b32 v12, s58, v24")
a("v_lshlrev_b32 v13, 16, v25")
a("v_and_b32 v14, s58, v25")
a("v_sub_f32 v16, v16, v11")
a("v_sub_f32 v17, v17, v12")
a("v_sub_f32 v18, v18, v13")
a("v_sub_f32 v19, v19, v14")
a("v_cvt_pk_bf16_f32 v26, v16, v17")
a("v_cvt_pk_bf16_f32 v27, v18, v19")
a("v_lshl_or_b32 v20, v6, 16, v5")
a("v_lshlrev_b32 v3, 5, v2")
a("buffer_store_dwordx4 v[20:23], v3, s[52:55], 0 offen")
a("buffer_store_dwordx4 v[24:27], v3, s[52:55], 0 offen offset:16")
a("K1_DSKIP:")
a("s_mov_b64 exec, s[84:85]")
a("s_add_u32 s68, s68, 1024")
a("s_branch K1_DENSE")

a("K1_MLP:")
a("s_waitcnt lgkmcnt(0)")
srd(36,16,N*1024); srd(40,26,32768); srd(44,28,98304); srd(48,32,PHI_SZ)
a(f"s_sub_u32 s56, s2, {NCH}")
a("s_lshl_b32 s56, s56, 6")
a("s_and_b32 s57, s66, 1")
a("s_lshr_b32 s59, s66, 1")
a("s_lshl_b32 s60, s57, 5")
a("s_add_u32 s61, s56, s60")
WST=16
SB=48
a("v_lshrrev_b32 v1, 3, v0")
a("v_and_b32 v2, 7, v0")
a("v_lshlrev_b32 v3, 8, v1")
a("v_lshl_add_u32 v3, v2, 4, v3")
a("v_mul_u32_u24 v4, 768, v1")
a("v_lshl_add_u32 v4, v2, 4, v4")
for i in range(2):
    a(f"buffer_load_dwordx4 v[{WST+4*i}:{WST+4*i+3}], v3, s[40:43], 0 offen offset:{i*128}")
a("v_and_b32 v5, 63, v0")
a("v_lshrrev_b32 v6, 4, v5")
a("v_and_b32 v7, 15, v5")
a("v_add_u32 v8, s61, v7")
a("v_lshlrev_b32 v8, 10, v8")
a("v_lshl_add_u32 v8, v6, 4, v8")
a("v_add_u32 v9, 16384, v8")
for mm in range(2):
    for ks in range(4):
        r=SB+16*mm+4*ks
        a(f"buffer_load_dwordx4 v[{r}:{r+3}], v{8+mm}, s[36:39], 0 offen offset:{ks*64}")
for i in range(6):
    a(f"buffer_load_dwordx4 v[{WST+8+4*i}:{WST+8+4*i+3}], v4, s[44:47], 0 offen offset:{i*128}")
a("v_lshrrev_b32 v10, 1, v2")
a("v_and_b32 v11, 3, v1")
a("v_xor_b32 v10, v10, v11")
a("v_lshlrev_b32 v10, 5, v10")
a("v_and_b32 v11, 1, v2")
a("v_lshl_add_u32 v10, v11, 4, v10")
a("v_bfe_u32 v11, v1, 3, 1")
a("v_lshl_add_u32 v10, v11, 7, v10")
a("v_lshl_add_u32 v11, v1, 8, v10")
a("v_xor_b32 v12, 128, v11")
a("v_mul_u32_u24 v13, 768, v1")
a("v_add_u32 v13, v13, v10")
a(f"v_add_u32 v13, {L_W2}, v13")
a("v_xor_b32 v14, 128, v13")
a("s_waitcnt vmcnt(14)")
a(f"ds_write_b128 v11, v[{WST}:{WST+3}]")
a(f"ds_write_b128 v12, v[{WST+4}:{WST+7}]")
a("v_bfe_u32 v1, v5, 2, 2")
a("v_and_b32 v2, 3, v5")
a("v_and_b32 v3, 1, v6")
a("v_lshl_add_u32 v3, v3, 2, v1")
a("v_lshl_add_u32 v4, v6, 3, v1")
a("v_xor_b32 v10, s59, v3")
a("v_lshlrev_b32 v10, 5, v10")
a("v_lshl_add_u32 v10, v2, 3, v10")
a("v_lshl_add_u32 v10, v4, 8, v10")
a("s_waitcnt lgkmcnt(0)")
a("s_barrier")
AF=80
for ks in range(4):
    for hh in range(2):
        r=AF+4*ks+2*hh
        a(f"ds_read_b64_tr_b16 v[{r}:{r+1}], v10 offset:{ks*8192+hh*1024}")
ACC=96
a("s_waitcnt vmcnt(6)")
for ks in range(4):
    a(f"s_waitcnt lgkmcnt({6-2*ks})")
    for mm in range(2):
        c = "0" if ks==0 else f"v[{ACC+4*mm}:{ACC+4*mm+3}]"
        a(f"v_mfma_f32_16x16x32_bf16 v[{ACC+4*mm}:{ACC+4*mm+3}], v[{AF+4*ks}:{AF+4*ks+3}], v[{SB+16*mm+4*ks}:{SB+16*mm+4*ks+3}], {c}")
a("s_waitcnt vmcnt(0)")
for i in range(6):
    a(f"ds_write_b128 v{13+(i&1)}, v[{WST+8+4*i}:{WST+8+4*i+3}] offset:{(i>>1)*256}")
a("v_add_u32 v11, s60, v7")
a(f"v_mul_u32_u24 v11, {HSTR}, v11")
a(f"v_add_u32 v11, {L_HS}, v11")
a("s_lshl_b32 s4, s59, 5")
a("v_lshl_add_u32 v12, v6, 3, v11")
a("v_add_u32 v12, s4, v12")
a(f"s_mov_b32 s5, {f2u(-1.4426950408889634)}")
for mm in range(2):
    b=ACC+4*mm
    rb2(b,b+1,15,58); rb2(b+2,b+3,15,58)
    for r in range(4): a(f"v_mul_f32 v{104+r}, s5, v{b+r}")
    for r in range(4): a(f"v_exp_f32 v{104+r}, v{104+r}")
    for r in range(4): a(f"v_add_f32 v{104+r}, 1.0, v{104+r}")
    for r in range(4): a(f"v_rcp_f32 v{104+r}, v{104+r}")
    for r in range(4): a(f"v_mul_f32 v{b+r}, v{b+r}, v{104+r}")
    a(f"v_cvt_pk_bf16_f32 v{108+2*mm}, v{b}, v{b+1}")
    a(f"v_cvt_pk_bf16_f32 v{109+2*mm}, v{b+2}, v{b+3}")
    a(f"ds_write_b64 v12, v[{108+2*mm}:{109+2*mm}] offset:{mm*16*HSTR}")
a("s_mul_i32 s4, s59, 96")
a("v_mul_u32_u24 v13, 24, v2")
a("v_add_u32 v13, s4, v13")
a("v_mul_u32_u24 v14, 768, v4")
a(f"v_add_u32 v14, {L_W2}, v14")
TB=16
for t in range(3):
    a(f"v_add_u32 v15, {8*t}, v13")
    a("v_lshrrev_b32 v22, 5, v15")
    a("v_xor_b32 v22, v22, v3")
    a("v_and_b32 v15, 31, v15")
    a("v_lshl_add_u32 v15, v22, 5, v15")
    a(f"v_add_u32 v{TB+2*t}, v14, v15")
    a(f"v_add_u32 v{TB+2*t+1}, 49152, v{TB+2*t}")
a("v_lshl_add_u32 v12, v6, 4, v11")
a("s_waitcnt lgkmcnt(0)")
a("s_barrier")
HB=48
for mm in range(2):
    for ks in range(4):
        r=HB+16*mm+4*ks
        a(f"ds_read_b128 v[{r}:{r+3}], v12 offset:{mm*16*HSTR+ks*64}")
for t in range(3):
    for ks in range(4):
        for hh in range(2):
            r=AF+16*t+4*ks+2*hh
            a(f"ds_read_b64_tr_b16 v[{r}:{r+1}], v{TB+2*t+(ks>>1)} offset:{(ks&1)*24576+hh*3072}")
AC2=24
for t in range(3):
    for ks in range(4):
        rem = 24-(8*t+2*ks+2)
        a(f"s_waitcnt lgkmcnt({min(rem,15)})")
        for mm in range(2):
            d=AC2+8*t+4*mm
            c = "0" if ks==0 else f"v[{d}:{d+3}]"
            a(f"v_mfma_f32_16x16x32_bf16 v[{d}:{d+3}], v[{AF+16*t+4*ks}:{AF+16*t+4*ks+3}], v[{HB+16*mm+4*ks}:{HB+16*mm+4*ks+3}], {c}")
a("v_add_u32 v8, s61, v7")
a("v_mul_u32_u24 v8, 768, v8")
a("v_mul_u32_u24 v9, 24, v6")
a("v_add3_u32 v8, v8, v9, s4")
a(f"v_add_u32 v9, {16*768}, v8")
for mm in range(2):
    o=80+8*mm
    for t in range(3):
        d=AC2+8*t+4*mm
        a(f"v_cvt_pk_bf16_f32 v{o+2*t}, v{d}, v{d+1}")
        a(f"v_cvt_pk_bf16_f32 v{o+2*t+1}, v{d+2}, v{d+3}")
    a(f"buffer_store_dwordx4 v[{o}:{o+3}], v{8+mm}, s[48:51], 0 offen")
    a(f"buffer_store_dwordx2 v[{o+4}:{o+5}], v{8+mm}, s[48:51], 0 offen offset:16")
a("K1_END:")
a("s_endpgm")

VJ16=1; VQ32=2; VAM=3; VAZ=4; VOP=5; VTAB=6; T0=7
BW=8; ACC=32; P=64; V=76; W=88; A_=112; M=116; RES=120; T1=124; T2=125; T3=126; T4=127
a(".globl painn_k2_kernel\n.p2align 8\n.type painn_k2_kernel,@function\npainn_k2_kernel:")
a(f"s_cmp_ge_u32 s2, {NBINS}")
a("s_cbranch_scc1 K2_END")
a("s_load_dwordx2 s[16:17], s[0:1], 0")
a("s_load_dwordx4 s[28:31], s[0:1], 56")
a("s_load_dwordx2 s[34:35], s[0:1], 80")
a("s_mov_b32 s64, 0xffff0000")
a(f"v_lshrrev_b32 v{T1}, 6, v0")
a(f"v_readfirstlane_b32 s65, v{T1}")
a(f"s_mul_i32 s66, s2, {NB}")
a(f"s_sub_u32 s67, {N}, s66")
a(f"s_min_u32 s67, s67, {NB}")
a("s_mov_b32 s68, 0")
a(f"v_and_b32 v{T1}, 63, v0")
a(f"v_and_b32 v{T2}, 15, v0")
a(f"v_bfe_u32 v{T3}, v0, 4, 2")
a(f"v_lshlrev_b32 v{VJ16}, 4, v{T2}")
a(f"v_lshlrev_b32 v{VQ32}, 5, v{T3}")
a(f"v_and_b32 v{T4}, 3, v0")
a(f"v_cmp_eq_u32 vcc, v{T4}, v{T3}")
a(f"v_lshrrev_b32 v{T4}, 2, v{T2}")
a(f"v_lshlrev_b32 v{T4}, 5, v{T4}")
a(f"v_add_u32 v{T4}, 16, v{T4}")
a(f"v_mov_b32 v{T0}, {L_ZERO}")
a(f"v_cndmask_b32 v{VAZ}, v{T0}, v{T4}, vcc")
a(f"v_cndmask_b32 v{VAM}, 0, 1, vcc")
a("s_waitcnt lgkmcnt(0)")
srd(48,34,TAB_SZ,TAB_OFF)
a("s_lshl_b32 s4, s2, 8")
a(f"v_lshlrev_b32 v{T4}, 2, v{T1}")
a(f"buffer_load_dword v{VTAB}, v{T4}, s[48:51], s4 offen")
srd(56,28,4*768)
a(f"v_lshl_add_u32 v{T4}, v{T2}, 3, v{T3}")
a(f"v_lshlrev_b32 v{T4}, 1, v{T4}")
for p in range(3):
    for h in range(2):
        r=BW+(p*2+h)*4
        for k in range(4):
            a(f"buffer_load_ushort v{r+k}, v{T4}, s[56:59], 0 offen offset:{k*768+p*256+h*8}")
srd(36,16,N*1024); srd(40,34,PHI_SZ); srd(44,30,N*1024); srd(52,34,REC_SZ,REC_OFF); srd(60,16,N*1024)
a("K2_ROUND:")
a(f"v_and_b32 v{T1}, 1, v0")
a(f"v_cmp_eq_u32 vcc, 0, v{T1}")
a(f"v_mov_b32 v{T0}, 0xffff00")
a(f"v_mov_b32 v{A_+1}, 0")
a(f"v_mov_b32 v{A_+2}, 0")
a(f"v_mov_b32 v{A_+3}, 0")
a(f"v_cndmask_b32 v{A_}, 0, v{T0}, vcc")
a(f"v_lshlrev_b32 v{T1}, 4, v0")
for i in range(K2_PIECES//256):
    a(f"ds_write_b128 v{T1}, v[{A_}:{A_+3}] offset:{L_REC+i*4096}")
a(f"v_and_b32 v{T1}, 15, v0")
a(f"v_lshlrev_b32 v{T1}, 2, v{T1}")
a(f"ds_write_b32 v{T1}, v{A_+1} offset:{L_CNT}")
a("s_waitcnt lgkmcnt(0)")
a("s_barrier")
a("s_waitcnt vmcnt(24)")
a(f"v_and_b32 v{T1}, 63, v0")
a(f"v_cmp_gt_u32 vcc, {NCH}, v{T1}")
a(f"v_cndmask_b32 v{VTAB}, 0, v{VTAB}, vcc")
a(f"v_mul_u32_u24 v{T1}, {CH}, v{T1}")
a(f"v_and_b32 v{T2}, 0xffff, v{VTAB}")
a(f"v_add_u32 v{T1}, v{T1}, v{T2}")
a(f"v_lshrrev_b32 v{T2}, 16, v{VTAB}")
a("s_lshl_b32 s4, s65, 1")
a("s_add_u32 s4, s4, s68")
a("s_add_u32 s5, s4, 1")
a(f"v_cmp_lt_u32 s[74:75], s4, v{T2}")
a(f"v_cmp_lt_u32 s[76:77], s5, v{T2}")
a(f"v_add_lshl_u32 v{T1}, v{T1}, s4, 5")
a(f"v_mov_b32 v{T0}, 0xffffff00")
a(f"v_cndmask_b32 v{T3}, v{T0}, v{T1}, s[74:75]")
a(f"v_cndmask_b32 v{T4}, v{T0}, v{T1}, s[76:77]")
RA=P; RB=P+8
a(f"buffer_load_dwordx4 v[{RA}:{RA+3}], v{T3}, s[52:55], 0 offen")
a(f"buffer_load_dwordx4 v[{RA+4}:{RA+7}], v{T3}, s[52:55], 0 offen offset:16")
a(f"buffer_load_dwordx4 v[{RB}:{RB+3}], v{T4}, s[52:55], 0 offen offset:32")
a(f"buffer_load_dwordx4 v[{RB+4}:{RB+7}], v{T4}, s[52:55], 0 offen offset:48")
a(f"v_mov_b32 v{T0}, 1")
a("s_waitcnt vmcnt(0)")
a("s_cmp_lg_u32 s68, 0")
a("s_cbranch_scc1 K2_NOPACK")
for p in range(6):
    r=BW+4*p
    a(f"v_lshl_or_b32 v{r}, v{r+1}, 16, v{r}")
    a(f"v_lshl_or_b32 v{r+1}, v{r+3}, 16, v{r+2}")
    a(f"v_mov_b32 v{r+2}, v{r}")
    a(f"v_mov_b32 v{r+3}, v{r+1}")
a("K2_NOPACK:")
a(f"v_lshrrev_b32 v{W}, 16, v{RA}")
a(f"v_lshrrev_b32 v{W+1}, 16, v{RB}")
a(f"v_lshlrev_b32 v{W}, 2, v{W}")
a(f"v_lshlrev_b32 v{W+1}, 2, v{W+1}")
a("s_mov_b64 exec, s[74:75]")
a(f"ds_add_rtn_u32 v{W+2}, v{W}, v{T0} offset:{L_CNT}")
a("s_mov_b64 exec, s[76:77]")
a(f"ds_add_rtn_u32 v{W+3}, v{W+1}, v{T0} offset:{L_CNT}")
a("s_mov_b64 exec, -1")
a(f"v_and_b32 v{RA}, 0xffff, v{RA}")
a(f"v_and_b32 v{RB}, 0xffff, v{RB}")
a(f"v_lshlrev_b32 v{RA}, 8, v{RA}")
a(f"v_lshlrev_b32 v{RB}, 8, v{RB}")
a("s_waitcnt lgkmcnt(0)")
a("s_barrier")
a(f"v_and_b32 v{T1}, 15, v0")
a(f"v_lshlrev_b32 v{T2}, 2, v{T1}")
a(f"ds_read_b32 v{T3}, v{T2} offset:{L_CNT}")
a(f"v_cmp_gt_u32 vcc, s67, v{T1}")
a("s_waitcnt lgkmcnt(0)")
a(f"v_add_u32 v{T3}, 3, v{T3}")
a(f"v_and_b32 v{T3}, -4, v{T3}")
a(f"v_max_u32 v{T3}, 4, v{T3}")
a(f"v_cndmask_b32 v{T3}, 0, v{T3}, vcc")
a(f"v_mov_b32 v{T4}, v{T3}")
for sh in (1,2,4,8):
    a(f"v_add_u32_dpp v{T4}, v{T4}, v{T4} row_shr:{sh} row_mask:0xf bank_mask:0xf")
a(f"v_sub_u32 v{T4}, v{T4}, v{T3}")
a(f"v_lshl_or_b32 v{VOP}, v{T3}, 16, v{T4}")
a(f"ds_bpermute_b32 v{W+4}, v{W}, v{T4}")
a(f"ds_bpermute_b32 v{W+5}, v{W+1}, v{T4}")
a("s_waitcnt lgkmcnt(0)")
a(f"v_add_lshl_u32 v{W+4}, v{W+4}, v{W+2}, 5")
a(f"v_add_lshl_u32 v{W+5}, v{W+5}, v{W+3}, 5")
a("s_mov_b64 exec, s[74:75]")
a(f"ds_write_b128 v{W+4}, v[{RA}:{RA+3}] offset:{L_REC}")
a(f"ds_write_b128 v{W+4}, v[{RA+4}:{RA+7}] offset:{L_REC+16}")
a("s_mov_b64 exec, s[76:77]")
a(f"ds_write_b128 v{W+5}, v[{RB}:{RB+3}] offset:{L_REC}")
a(f"ds_write_b128 v{W+5}, v[{RB+4}:{RB+7}] offset:{L_REC+16}")
a("s_mov_b64 exec, -1")
a("s_waitcnt lgkmcnt(0)")
a("s_barrier")
a("s_mov_b32 s69, s65")
a("K2_NODE:")
a("s_cmp_ge_u32 s69, s67")
a("s_cbranch_scc1 K2_NODES_DONE")
a(f"v_readlane_b32 s72, v{VOP}, s69")
a(f"v_lshl_add_u32 v{T1}, v{VQ32}, 3, v{VJ16}")
a("s_add_u32 s73, s66, s69")
a("s_lshl_b32 s73, s73, 10")
a(f"buffer_load_dwordx4 v[{RES}:{RES+3}], v{T1}, s[60:63], s73 offen")
a("s_and_b32 s70, s72, 0xffff")
a("s_lshr_b32 s71, s72, 16")
a("s_lshl_b32 s70, s70, 5")
a(f"s_add_u32 s70, s70, {L_REC}")
a("s_lshl_b32 s71, s71, 5")
a("s_add_u32 s71, s71, s70")
for i in range(32): a(f"v_mov_b32 v{ACC+i}, 0")
a("K2_GROUP:")
a(f"v_add_u32 v{T1}, s70, v{VQ32}")
a(f"v_mad_u32_u24 v{T2}, s70, v{VAM}, v{VAZ}")
a(f"ds_read_b128 v[{M}:{M+3}], v{T1}")
a(f"ds_read_b128 v[{A_}:{A_+3}], v{T2}")
a("s_waitcnt lgkmcnt(1)")
a(f"v_mad_u32_u24 v{T1}, v{M}, 3, v{VJ16}")
a(f"v_lshl_add_u32 v{T2}, v{M}, 2, v{VJ16}")
for i in range(3):
    a(f"buffer_load_dwordx4 v[{P+4*i}:{P+4*i+3}], v{T1}, s[40:43], 0 offen offset:{256*i}")
for i in range(3):
    a(f"buffer_load_dwordx4 v[{V+4*i}:{V+4*i+3}], v{T2}, s[36:39], 0 offen offset:{256*(i+1)}")
a("s_waitcnt lgkmcnt(0)")
for p in range(6):
    a(f"v_mfma_f32_16x16x32_bf16 v[{W+4*p}:{W+4*p+3}], v[{A_}:{A_+3}], v[{BW+4*p}:{BW+4*p+3}], 0")
a("s_add_u32 s70, s70, 128")
a("s_waitcnt vmcnt(0)")
for d in range(4):
    a(f"v_lshlrev_b32 v{T1}, 16, v{P+d}")
    a(f"v_and_b32 v{P+d}, s64, v{P+d}")
    a(f"v_lshlrev_b32 v{T2}, 16, v{P+4+d}")
    a(f"v_and_b32 v{P+4+d}, s64, v{P+4+d}")
    a(f"v_lshlrev_b32 v{T3}, 16, v{P+8+d}")
    a(f"v_and_b32 v{P+8+d}, s64, v{P+8+d}")
    a(f"v_fmac_f32 v{ACC+2*d}, v{T1}, v{W+2*d}")
    a(f"v_fmac_f32 v{ACC+2*d+1}, v{P+d}, v{W+2*d+1}")
    a(f"v_mul_f32 v{W+8+2*d}, v{T2}, v{W+8+2*d}")
    a(f"v_mul_f32 v{W+9+2*d}, v{P+4+d}, v{W+9+2*d}")
    a(f"v_mul_f32 v{W+16+2*d}, v{T3}, v{W+16+2*d}")
    a(f"v_mul_f32 v{W+17+2*d}, v{P+8+d}, v{W+17+2*d}")
    for c in range(3):
        t=(T1,T2,T3)[c]
        a(f"v_lshlrev_b32 v{t}, 16, v{V+4*c+d}")
        a(f"v_and_b32 v{V+4*c+d}, s64, v{V+4*c+d}")
        a(f"v_fmac_f32 v{ACC+8+8*c+2*d}, v{W+16+2*d}, v{M+1+c}")
        a(f"v_fmac_f32 v{ACC+9+8*c+2*d}, v{W+17+2*d}, v{M+1+c}")
        a(f"v_fmac_f32 v{ACC+8+8*c+2*d}, v{W+8+2*d}, v{t}")
        a(f"v_fmac_f32 v{ACC+9+8*c+2*d}, v{W+9+2*d}, v{V+4*c+d}")
a("s_cmp_lt_u32 s70, s71")
a("s_cbranch_scc1 K2_GROUP")
for i in range(16): a(f"v_permlane32_swap_b32 v{ACC+i}, v{ACC+16+i}")
for i in range(16): a(f"v_add_f32 v{ACC+i}, v{ACC+i}, v{ACC+16+i}")
for i in range(8): a(f"v_permlane16_swap_b32 v{ACC+i}, v{ACC+8+i}")
for i in range(8): a(f"v_add_f32 v{ACC+i}, v{ACC+i}, v{ACC+8+i}")
for d in range(4):
    a(f"v_cvt_pk_bf16_f32 v{T1}, v{ACC+2*d}, v{ACC+2*d+1}")
    a(f"v_lshlrev_b32 v{T2}, 16, v{RES+d}")
    a(f"v_and_b32 v{T3}, s64, v{RES+d}")
    a(f"v_lshlrev_b32 v{ACC+2*d}, 16, v{T1}")
    a(f"v_and_b32 v{ACC+2*d+1}, s64, v{T1}")
    a(f"v_add_f32 v{T2}, v{T2}, v{ACC+2*d}")
    a(f"v_add_f32 v{T3}, v{T3}, v{ACC+2*d+1}")
    a(f"v_cvt_pk_bf16_f32 v{W+d}, v{T2}, v{T3}")
a(f"v_lshl_add_u32 v{T1}, v{VQ32}, 3, v{VJ16}")
a(f"buffer_store_dwordx4 v[{W}:{W+3}], v{T1}, s[44:47], s73 offen")
a("s_add_u32 s69, s69, 4")
a("s_branch K2_NODE")
a("K2_NODES_DONE:")
a("s_add_u32 s68, s68, 8")
a(f"v_lshrrev_b32 v{T2}, 16, v{VTAB}")
a(f"v_cmp_lt_u32 vcc, s68, v{T2}")
a("s_cbranch_vccz K2_END")
a("s_mov_b32 s60, s44")
a("s_mov_b32 s61, s45")
a("s_waitcnt vmcnt(0)")
a("s_barrier")
a("s_branch K2_ROUND")
a("K2_END:")
a("s_endpgm")

body=a.finalize()
def kd(name, vg, sg):
    return f""".amdhsa_kernel {name}
  .amdhsa_next_free_vgpr {vg}
  .amdhsa_next_free_sgpr {sg}
  .amdhsa_accum_offset {vg}
  .amdhsa_group_segment_fixed_size 0
  .amdhsa_kernarg_size 88
  .amdhsa_user_sgpr_count 2
  .amdhsa_user_sgpr_kernarg_segment_ptr 1
  .amdhsa_system_sgpr_workgroup_id_x 1
.end_amdhsa_kernel
"""
out=hdr+body+'.section .rodata,"a"\n.p2align 6\n'+kd("painn_k1_kernel",128,96)+".p2align 6\n"+kd("painn_k2_kernel",128,96)
open(sys.argv[1] if len(sys.argv)>1 else "gather_scatter__molecular_angular_painn__graph.s","w").write(out)
print("K1_LDS",K1_LDS,"K2_LDS",K2_LDS,"NBINS",NBINS)
```
